```python
import torch

def _softmax(x, axis=-1):
    return torch.softmax(x, dim=axis)
def _gelu(x):
    return torch.nn.functional.gelu(x, approximate="tanh")
def _silu(x):
    return torch.nn.functional.silu(x)
def _sigmoid(x):
    return torch.sigmoid(x)
def _layernorm(x, axis=-1, eps=1e-5):
    m = x.mean(dim=axis, keepdim=True)
    v = x.var(dim=axis, keepdim=True, unbiased=False)
    return (x - m) / torch.sqrt(v + eps)
def _scatter_add(tgt, idx, src, axis=0):
    return tgt.clone().index_add_(axis, idx, src)
def _segment_sum(src, seg, n):
    out = torch.zeros((n,) + src.shape[1:], dtype=src.dtype)
    return out.index_add_(0, seg, src)
def _pad(x, pw):
    flat = tuple(v for pair in reversed(pw) for v in pair)
    return torch.nn.functional.pad(x, flat)

kernel_name = 'gather_scatter__edge_featured_mpnn_mpnn__graph'

def setup_inputs():

    _w = (lambda a: (lambda t: t.to(torch.bfloat16) if t.is_floating_point() else t)(torch.as_tensor(a)))
    N, deg, D, De = 10000, 32, 128, max(0, 1)
    E = N * deg
    H = 2 * D
    return {
        "x": _w((lambda *s: torch.randn(*s, dtype=torch.bfloat16) * 0.05)(N, D)),
        "e_attr": _w((lambda *s: torch.randn(*s, dtype=torch.bfloat16) * 1.6)(E, De)),
        "src": _w((lambda lo, hi, *s: torch.randint(lo, hi, s))(0, N, E).to(torch.int64)),
        "dst": _w((lambda lo, hi, *s: torch.randint(lo, hi, s))(0, N, E).to(torch.int64)),
        "w1": _w((lambda *s: torch.randn(*s, dtype=torch.bfloat16) * 1.6)(2 * D + De, H) * (1.0 / (2 * D + De) ** 0.5)),
        "b1": _w((lambda *s: torch.randn(*s, dtype=torch.bfloat16) * 0.8)(H) * 0.01),
        "w2": _w((lambda *s: torch.randn(*s, dtype=torch.bfloat16) * 0.05)(H, D) * (1.0 / H ** 0.5)),
        "b2": _w((lambda *s: torch.randn(*s, dtype=torch.bfloat16) * 0.05)(D) * 0.01),
    }

def reference(x, e_attr, src, dst, w1, b1, w2, b2):
    N, D = x.shape
    h_src = x[src]
    h_dst = x[dst]
    m_in = torch.concatenate([h_src, h_dst, e_attr], axis=-1)
    h = _silu(m_in @ w1 + b1)
    msg = h @ w2 + b2
    return _segment_sum(msg, dst, N)
```

```python
import sys
N=10000; E=320000; D=128; H=256
W=64; CE=5000; NB=1250
WS_P=0; WS_Q=0x800000; WS_REC=0x2000000; WS_OFFS=0x2400000; WS_W2T=0x2600000; WS_W1C=0x2620000
OFFS_STRIDE=5120
C_SCALE=0xBFB8AA3B
C_NLN2=0xBF317218
name="gather_scatter__edge_featured_mpnn_mpnn__graph"
out=[]
def e(s): out.append("    "+s)
def lab(s): out.append(s+":")

def srd(r, lo, hi, add, nrec):
    if add:
        e(f"s_add_u32 s{r}, s{lo}, {add}")
        e(f"s_addc_u32 s{r+1}, s{hi}, 0")
    else:
        e(f"s_mov_b32 s{r}, s{lo}")
        e(f"s_mov_b32 s{r+1}, s{hi}")
    e(f"s_mov_b32 s{r+2}, {nrec}")
    e(f"s_mov_b32 s{r+3}, 0x00020000")

def wave_scan(v):
    for sh in (1,2,4,8):
        e("s_nop 1")
        e(f"v_add_u32_dpp v{v}, v{v}, v{v} row_shr:{sh} row_mask:0xf bank_mask:0xf bound_ctrl:0")
    e("s_nop 1")
    e(f"v_add_u32_dpp v{v}, v{v}, v{v} row_bcast:15 row_mask:0xa bank_mask:0xf")
    e("s_nop 1")
    e(f"v_add_u32_dpp v{v}, v{v}, v{v} row_bcast:31 row_mask:0xc bank_mask:0xf")

NG=313
hdr=f"""; @launch kernel=prep_kernel grid=({W+NG+1},1,1) block=(512,1,1) lds=6144
; @launch kernel=main_kernel grid=({NB},1,1) block=(128,1,1) lds=27136
.amdgcn_target "amdgcn-amd-amdhsa--gfx950"
.text
"""
out.append(".globl prep_kernel\n.p2align 8\n.type prep_kernel,@function\nprep_kernel:")
e("s_load_dwordx4 s[4:7], s[0:1], 0")
e("s_load_dwordx4 s[8:11], s[0:1], 16")
e("s_load_dwordx4 s[12:15], s[0:1], 32")
e("s_load_dwordx4 s[16:19], s[0:1], 48")
e("s_load_dwordx2 s[20:21], s[0:1], 80")
e("s_waitcnt lgkmcnt(0)")
e(f"s_cmp_ge_u32 s2, {W+NG+1}")
e("s_cbranch_scc1 L_prep_end")
e(f"s_cmp_ge_u32 s2, {W+NG}")
e("s_cbranch_scc1 L_w2t")
e(f"s_cmp_ge_u32 s2, {W}")
e("s_cbranch_scc1 L_gemm")
srd(24, 8, 9, 0, E*4)
srd(28, 10, 11, 0, E*4)
srd(32, 6, 7, 0, E*2)
srd(36, 20, 21, WS_REC, E*8)
srd(40, 20, 21, WS_OFFS, W*OFFS_STRIDE)
e(f"s_mul_i32 s44, s2, {CE}")
e("v_lshlrev_b32 v1, 2, v0")
e("v_mov_b32 v2, 0")
e("ds_write_b32 v1, v2")
e("ds_write_b32 v1, v2 offset:2048")
e("ds_write_b32 v1, v2 offset:4096")
e("v_add_u32 v3, s44, v0")
e("v_lshlrev_b32 v4, 2, v3")
e("v_lshlrev_b32 v5, 1, v3")
e(f"v_cmp_gt_u32 vcc, {CE-512*9}, v0")
e("s_mov_b64 s[46:47], vcc")
for i in range(9):
    e(f"buffer_load_dword v{10+i}, v4, s[28:31], 0 offen offset:{2048*i if 2048*i<4096 else 0}" if 2048*i<4096 else f"s_mov_b32 s45, {2048*i}\n    buffer_load_dword v{10+i}, v4, s[28:31], s45 offen")
    e(f"buffer_load_dword v{20+i}, v4, s[24:27], 0 offen offset:{2048*i}" if 2048*i<4096 else f"buffer_load_dword v{20+i}, v4, s[24:27], s45 offen")
    e(f"buffer_load_ushort v{30+i}, v5, s[32:35], 0 offen offset:{1024*i}" if 1024*i<4096 else f"s_mov_b32 s48, {1024*i}\n    buffer_load_ushort v{30+i}, v5, s[32:35], s48 offen")
e("s_mov_b64 s[50:51], exec")
e("s_mov_b64 exec, s[46:47]")
e(f"s_mov_b32 s45, {2048*9}")
e(f"s_mov_b32 s48, {1024*9}")
e("buffer_load_dword v19, v4, s[28:31], s45 offen")
e("buffer_load_dword v29, v4, s[24:27], s45 offen")
e("buffer_load_ushort v39, v5, s[32:35], s48 offen")
e("s_mov_b64 exec, s[50:51]")
e("s_waitcnt lgkmcnt(0)")
e("s_barrier")
e("v_mov_b32 v2, 1")
for i in range(10):
    if i==9: e("s_mov_b64 exec, s[46:47]")
    e(f"s_waitcnt vmcnt({(9-i)*3+2})" if i<9 else "s_waitcnt vmcnt(0)")
    e(f"v_lshrrev_b32 v6, 3, v{10+i}")
    e("v_lshlrev_b32 v6, 2, v6")
    e(f"ds_add_rtn_u32 v{40+i}, v6, v2")
e("s_mov_b64 exec, s[50:51]")
e("s_waitcnt lgkmcnt(0)")
e("s_barrier")
e("v_cmp_gt_u32 vcc, 64, v0")
e("s_and_saveexec_b64 s[52:53], vcc")
e("s_cbranch_execz L_scan_done")
e("v_mul_u32_u24 v6, 80, v0")
for q in range(5):
    e(f"ds_read_b128 v[{60+4*q}:{63+4*q}], v6 offset:{16*q}")
e("s_waitcnt lgkmcnt(0)")
e("v_mov_b32 v7, 0")
for q in range(20):
    e(f"v_mov_b32 v{80+q}, v7")
    e(f"v_add_u32 v7, v7, v{60+q}")
e("v_mov_b32 v8, v7")
wave_scan(8)
e("v_sub_u32 v8, v8, v7")
for q in range(20):
    e(f"v_add_u32 v{80+q}, v{80+q}, v8")
e(f"s_mul_i32 s45, s2, {OFFS_STRIDE}")
for q in range(5):
    e(f"ds_write_b128 v6, v[{80+4*q}:{83+4*q}] offset:{16*q}")
    e(f"buffer_store_dwordx4 v[{80+4*q}:{83+4*q}], v6, s[40:43], s45 offen offset:{16*q}")
lab("L_scan_done")
e("s_mov_b64 exec, s[52:53]")
e("s_waitcnt lgkmcnt(0)")
e("s_barrier")
e(f"s_lshl_b32 s45, s44, 3")
for i in range(10):
    if i==9: e("s_mov_b64 exec, s[46:47]")
    e(f"v_lshrrev_b32 v6, 3, v{10+i}")
    e("v_lshlrev_b32 v6, 2, v6")
    e("ds_read_b32 v7, v6")
    e(f"v_and_b32 v8, 7, v{10+i}")
    e("v_lshlrev_b32 v8, 16, v8")
    e(f"v_or_b32 v51, v8, v{30+i}")
    e(f"v_mov_b32 v50, v{20+i}")
    e("s_waitcnt lgkmcnt(0)")
    e(f"v_add_u32 v7, v7, v{40+i}")
    e("v_lshlrev_b32 v7, 3, v7")
    e("buffer_store_dwordx2 v[50:51], v7, s[36:39], s45 offen")
    e("s_nop 1")
e("s_endpgm")
lab("L_gemm")
srd(24, 12, 13, 0, 257*512)
srd(28, 4, 5, 0, N*256)
srd(32, 20, 21, WS_P, N*512)
srd(36, 20, 21, WS_Q, N*1024)
srd(40, 14, 15, 0, 512)
e(f"s_sub_u32 s44, s2, {W}")
e("v_lshrrev_b32 v1, 6, v0")
e("s_nop 0")
e("v_readfirstlane_b32 s45, v1")
e("v_and_b32 v1, 63, v0")
e("v_and_b32 v2, 31, v1")
e("v_lshrrev_b32 v3, 5, v1")
e("s_lshl_b32 s46, s45, 6")
e("s_and_b32 s47, s46, 255")
e("s_cmp_ge_u32 s45, 4")
e("s_cselect_b32 s48, 128, 0")
e("v_lshlrev_b32 v4, 3, v3")
e("v_add_u32 v4, s48, v4")
e("v_lshlrev_b32 v4, 9, v4")
e("v_add_u32 v5, s47, v2")
e("v_lshlrev_b32 v5, 1, v5")
e("v_add_u32 v4, v4, v5")
e("s_lshl_b32 s49, s44, 5")
e("v_add_u32 v6, s49, v2")
e("v_lshlrev_b32 v7, 8, v6")
e("v_lshlrev_b32 v8, 4, v3")
e("v_add_u32 v7, v7, v8")
for ks in range(8):
    e(f"buffer_load_dwordx4 v[{32+4*ks}:{35+4*ks}], v7, s[28:31], 0 offen offset:{32*ks}")
for half in range(2):
    for ks in range(4*half,4*half+4):
        e(f"s_mov_b32 s50, {8192*ks}")
        for mt in range(2):
            t=160+16*(ks%4)+8*mt
            for j in range(8):
                e(f"buffer_load_ushort v{t+j}, v4, s[24:27], s50 offen offset:{512*j+64*mt}")
    e("s_waitcnt vmcnt(0)")
    for ks in range(4*half,4*half+4):
        for mt in range(2):
            t=160+16*(ks%4)+8*mt; b=64+32*mt+4*ks
            for j in range(4):
                e(f"v_lshl_or_b32 v{b+j}, v{t+2*j+1}, 16, v{t+2*j}")
for i in range(32): e(f"v_mov_b32 v{128+i}, 0")
e("s_waitcnt vmcnt(0)")
for ks in range(8):
    for mt in range(2):
        e(f"v_mfma_f32_32x32x16_bf16 v[{128+16*mt}:{143+16*mt}], v[{64+32*mt+4*ks}:{67+32*mt+4*ks}], v[{32+4*ks}:{35+4*ks}], v[{128+16*mt}:{143+16*mt}]")
e("s_nop 15")
e("s_nop 7")
e(f"s_mov_b32 s51, {C_SCALE}")
e("s_cmp_ge_u32 s45, 4")
e("s_cbranch_scc1 L_gemm_q")
e("v_lshlrev_b32 v9, 9, v6")
e("v_lshlrev_b32 v10, 3, v3")
e("v_add_u32 v9, v9, v10")
e("s_lshl_b32 s52, s46, 1")
for mt in range(2):
    for g in range(4):
        a=128+16*mt+4*g
        for r in range(4): e(f"v_mul_f32 v{a+r}, s51, v{a+r}")
        e(f"v_cvt_pk_bf16_f32 v{12}, v{a}, v{a+1}")
        e(f"v_cvt_pk_bf16_f32 v{13}, v{a+2}, v{a+3}")
        e(f"buffer_store_dwordx2 v[12:13], v9, s[32:35], s52 offen offset:{64*mt+16*g}")
        e("s_nop 1")
e("s_endpgm")
lab("L_gemm_q")
e("v_lshlrev_b32 v10, 3, v3")
e("s_lshl_b32 s52, s47, 1")
for mt in range(2):
    for g in range(4):
        e(f"buffer_load_dwordx2 v[{160+8*mt+2*g}:{161+8*mt+2*g}], v10, s[40:43], s52 offen offset:{64*mt+16*g}")
e("v_lshlrev_b32 v9, 10, v6")
e("v_lshlrev_b32 v10, 4, v3")
e("v_add_u32 v9, v9, v10")
e("s_lshl_b32 s52, s47, 2")
e("s_waitcnt vmcnt(0)")
for mt in range(2):
    for g in range(4):
        a=128+16*mt+4*g; bb=160+8*mt+2*g
        e(f"v_lshlrev_b32 v12, 16, v{bb}")
        e(f"v_and_b32 v13, 0xffff0000, v{bb}")
        e(f"v_lshlrev_b32 v14, 16, v{bb+1}")
        e(f"v_and_b32 v15, 0xffff0000, v{bb+1}")
        for r in range(4):
            e(f"v_add_f32 v{a+r}, v{a+r}, v{12+r}")
            e(f"v_mul_f32 v{a+r}, s51, v{a+r}")
        e(f"buffer_store_dwordx4 v[{a}:{a+3}], v9, s[36:39], s52 offen offset:{128*mt+32*g}")
e("s_endpgm")
lab("L_w2t")
srd(24, 16, 17, 0, 256*128*2)
srd(28, 20, 21, WS_W2T, 256*128*2)
srd(32, 12, 13, 256*512, 512)
srd(36, 20, 21, WS_W1C, 1024)
e("v_lshlrev_b32 v1, 1, v0")
e("v_lshrrev_b32 v2, 7, v0")
e("v_and_b32 v3, 127, v0")
e("v_lshlrev_b32 v3, 9, v3")
e("v_lshl_add_u32 v3, v2, 1, v3")
for it in range(64):
    e(f"s_mov_b32 s40, {1024*it}")
    e(f"buffer_load_ushort v{10+it}, v1, s[24:27], s40 offen")
e("s_waitcnt vmcnt(0)")
for it in range(64):
    e(f"buffer_store_short v{10+it}, v3, s[28:31], 0 offen offset:{8*it}")
e("v_cmp_gt_u32 vcc, 256, v0")
e("s_and_saveexec_b64 s[40:41], vcc")
e("s_cbranch_execz L_prep_end")
e("buffer_load_ushort v4, v1, s[32:35], 0 offen")
e(f"s_mov_b32 s42, {C_SCALE}")
e("v_lshlrev_b32 v5, 2, v0")
e("s_waitcnt vmcnt(0)")
e("v_lshlrev_b32 v4, 16, v4")
e("v_mul_f32 v4, s42, v4")
e("buffer_store_dword v4, v5, s[36:39], 0 offen")
lab("L_prep_end")
e("s_endpgm")

SACC=0; QS=8192; LA=16384; LB=20480; CNT=25600; NOFF=25664; DEG=25728; CST=25856; CSRC=26112; CCNT=26368; TOT=26624
CAP=512
out.append(".globl main_kernel\n.p2align 8\n.type main_kernel,@function\nmain_kernel:")
e("s_load_dwordx2 s[4:5], s[0:1], 80")
e("s_load_dwordx2 s[6:7], s[0:1], 64")
e("s_load_dwordx2 s[40:41], s[0:1], 56")
e("s_waitcnt lgkmcnt(0)")
e(f"s_cmp_ge_u32 s2, {NB}")
e("s_cbranch_scc1 L_main_end")
srd(8, 4, 5, WS_P, N*512)
srd(12, 4, 5, WS_REC, E*8)
srd(16, 4, 5, WS_OFFS, W*OFFS_STRIDE)
srd(20, 4, 5, WS_Q, N*1024)
srd(24, 4, 5, WS_W2T, 65536)
srd(28, 6, 7, 0, N*256)
srd(32, 4, 5, WS_W1C, 1024)
srd(36, 40, 41, 0, 256)
e("v_and_b32 v2, 63, v0")
e("v_lshlrev_b32 v1, 3, v2")
e("v_lshlrev_b32 v3, 4, v2")
e("v_lshrrev_b32 v46, 6, v0")
e("s_nop 0")
e("v_readfirstlane_b32 s3, v46")
e("v_lshlrev_b32 v46, 6, v0")
e("s_lshl_b32 s42, s2, 13")
for q in range(4): e(f"buffer_load_dwordx4 v[{48+4*q}:{51+4*q}], v46, s[20:23], s42 offen offset:{16*q}")
e("buffer_load_dwordx4 v[4:7], v3, s[32:35], 0 offen")
e("v_mov_b32 v64, 0\n    v_mov_b32 v65, 0\n    v_mov_b32 v66, 0\n    v_mov_b32 v67, 0")
for q in range(4): e(f"ds_write_b128 v46, v[64:67] offset:{SACC+16*q}")
e("v_lshlrev_b32 v47, 2, v0")
e("v_cmp_gt_u32 vcc, 8, v0")
e("s_and_saveexec_b64 s[44:45], vcc")
e(f"ds_write_b32 v47, v64 offset:{DEG}")
e("s_mov_b64 exec, s[44:45]")
e("v_cmp_gt_u32 vcc, 64, v0")
e("s_and_saveexec_b64 s[44:45], vcc")
e("s_cbranch_execz L_b_done")
e(f"v_mul_u32_u24 v68, {OFFS_STRIDE}, v0")
e("s_lshl_b32 s42, s2, 2")
e("buffer_load_dwordx2 v[70:71], v68, s[16:19], s42 offen")
e("s_waitcnt vmcnt(0)")
e("v_sub_u32 v72, v71, v70")
e("v_mov_b32 v73, v72")
wave_scan(73)
e("v_sub_u32 v74, v73, v72")
e(f"v_mul_u32_u24 v75, {CE}, v0")
e("v_add_u32 v75, v75, v70")
e(f"ds_write_b32 v47, v74 offset:{CST}")
e(f"ds_write_b32 v47, v75 offset:{CSRC}")
e(f"ds_write_b32 v47, v72 offset:{CCNT}")
e("v_cmp_eq_u32 vcc, 63, v0")
e("s_and_b64 exec, exec, vcc")
e("v_mov_b32 v76, 0")
e(f"ds_write_b32 v76, v73 offset:{TOT}")
lab("L_b_done")
e("s_mov_b64 exec, s[44:45]")
e("s_waitcnt vmcnt(0)")
for q in range(4): e(f"ds_write_b128 v46, v[{48+4*q}:{51+4*q}] offset:{QS+16*q}")
e("s_waitcnt lgkmcnt(0)")
e("s_barrier")
e("v_mov_b32 v76, 0")
e(f"ds_read_b32 v77, v76 offset:{TOT}")
e("v_lshrrev_b32 v78, 1, v0")
e("v_lshlrev_b32 v78, 2, v78")
e(f"ds_read_b32 v79, v78 offset:{CST}")
e(f"ds_read_b32 v80, v78 offset:{CSRC}")
e(f"ds_read_b32 v81, v78 offset:{CCNT}")
e("s_waitcnt lgkmcnt(0)")
e("v_readfirstlane_b32 s46, v77")
e("s_mov_b32 s47, 0")
lab("L_batch")
e("s_cmp_ge_u32 s47, s46")
e("s_cbranch_scc1 L_final")
e("v_cmp_gt_u32 vcc, 8, v0")
e("s_and_saveexec_b64 s[44:45], vcc")
e(f"ds_write_b32 v47, v64 offset:{CNT}")
e("s_mov_b64 exec, s[44:45]")
e("s_waitcnt lgkmcnt(0)")
e("s_barrier")
e("v_and_b32 v82, 1, v0")
lab("L_copy")
e("v_cmp_lt_u32 vcc, v82, v81")
e("s_and_saveexec_b64 s[44:45], vcc")
e("s_cbranch_execz L_copy_done")
e("v_add_u32 v83, v79, v82")
e("v_subrev_u32 v83, s47, v83")
e(f"v_cmp_gt_u32 vcc, {CAP}, v83")
e("s_and_saveexec_b64 s[48:49], vcc")
e("s_cbranch_execz L_copy_skip")
e("v_add_u32 v84, v80, v82")
e("v_lshlrev_b32 v84, 3, v84")
e("buffer_load_dwordx2 v[86:87], v84, s[12:15], 0 offen")
e("v_mov_b32 v85, 1")
e("s_waitcnt vmcnt(0)")
e("v_lshrrev_b32 v88, 16, v87")
e("v_lshlrev_b32 v89, 2, v88")
e(f"ds_add_rtn_u32 v90, v89, v85 offset:{CNT}")
e("v_lshlrev_b32 v87, 16, v87")
e("v_or_b32 v87, v87, v88")
e("v_lshlrev_b32 v83, 3, v83")
e("s_waitcnt lgkmcnt(0)")
e("v_lshl_or_b32 v86, v90, 16, v86")
e(f"ds_write_b64 v83, v[86:87] offset:{LA}")
lab("L_copy_skip")
e("s_mov_b64 exec, s[44:45]")
e("v_add_u32 v82, 2, v82")
e("s_branch L_copy")
lab("L_copy_done")
e("s_mov_b64 exec, s[44:45]")
e("s_waitcnt lgkmcnt(0)")
e("s_barrier")
e("v_mov_b32 v76, 0")
e(f"ds_read_b128 v[92:95], v76 offset:{CNT}")
e(f"ds_read_b128 v[96:99], v76 offset:{CNT+16}")
e("s_waitcnt lgkmcnt(0)")
e("v_mov_b32 v100, 0")
for q in range(8): e(f"v_add_u32 v{101+q}, v{100+q}, v{92+q}")
e("v_cmp_eq_u32 vcc, 0, v0")
e("s_and_saveexec_b64 s[44:45], vcc")
e(f"ds_write_b128 v76, v[100:103] offset:{NOFF}")
e(f"ds_write_b128 v76, v[104:107] offset:{NOFF+16}")
e(f"ds_write_b32 v76, v108 offset:{NOFF+32}")
e(f"ds_add_u32 v76, v92 offset:{DEG}")
for q in range(1,8): e(f"ds_add_u32 v76, v{92+q} offset:{DEG+4*q}")
e("s_mov_b64 exec, s[44:45]")
e("s_waitcnt lgkmcnt(0)")
e("s_barrier")
e("s_sub_u32 s48, s46, s47")
e(f"s_min_u32 s48, s48, {CAP}")
e("v_mov_b32 v82, v0")
lab("L_move")
e("v_cmp_gt_u32 vcc, s48, v82")
e("s_and_saveexec_b64 s[44:45], vcc")
e("s_cbranch_execz L_move_done")
e("v_lshlrev_b32 v83, 3, v82")
e(f"ds_read_b64 v[86:87], v83 offset:{LA}")
e("s_waitcnt lgkmcnt(0)")
e("v_and_b32 v88, 7, v87")
e("v_lshlrev_b32 v88, 2, v88")
e(f"ds_read_b32 v89, v88 offset:{NOFF}")
e("v_lshrrev_b32 v90, 16, v86")
e("v_and_b32 v86, 0xffff, v86")
e("v_lshlrev_b32 v86, 9, v86")
e("s_waitcnt lgkmcnt(0)")
e("v_add_u32 v89, v89, v90")
e("v_lshlrev_b32 v89, 3, v89")
e(f"ds_write_b64 v89, v[86:87] offset:{LB}")
e("s_mov_b64 exec, s[44:45]")
e("v_add_u32 v82, 128, v82")
e("s_branch L_move")
lab("L_move_done")
e("s_mov_b64 exec, s[44:45]")
e("s_waitcnt lgkmcnt(0)")
e("s_barrier")
e("s_lshl_b32 s48, s3, 4")
e("v_mov_b32 v76, s48")
e(f"ds_read_b32 v77, v76 offset:{NOFF}")
e(f"ds_read_b32 v78, v76 offset:{NOFF+16}")
e("s_waitcnt lgkmcnt(0)")
e("v_readfirstlane_b32 s50, v77")
e("v_readfirstlane_b32 s51, v78")
e("s_nop 3")
e("s_cmp_ge_u32 s50, s51")
e("s_cbranch_scc1 L_edges_done")
e("s_mov_b32 s52, s50")
e("s_lshl_b32 s53, s52, 3")
e("v_add_u32 v76, s53, v1")
e(f"ds_read_b64 v[32:33], v76 offset:{LB}")
e("s_waitcnt lgkmcnt(0)")
for k in range(8):
    e(f"v_readlane_b32 s54, v32, {k}")
    e(f"v_readlane_b32 s55, v33, {k}")
    e("s_nop 4")
    e(f"s_and_b32 s{60+k}, s55, 0xffff0000")
    e(f"s_and_b32 s{68+k}, s55, 7")
    e(f"buffer_load_dwordx2 v[{16+2*k}:{17+2*k}], v1, s[8:11], s54 offen")
e("s_mov_b32 s56, 8")
e("s_mov_b32 s57, s68")
e("s_lshl_b32 s53, s57, 10")
e("v_add_u32 v76, s53, v3")
e(f"ds_read_b128 v[8:11], v76 offset:{QS}")
for r in range(4): e(f"v_mov_b32 v{12+r}, 0")
e("s_waitcnt lgkmcnt(0)")
lab("L_group")
e("s_cmp_lt_u32 s56, 64")
e("s_cbranch_scc1 L_nofill")
e("s_add_u32 s52, s52, 64")
e("s_lshl_b32 s53, s52, 3")
e("v_add_u32 v76, s53, v1")
e(f"ds_read_b64 v[32:33], v76 offset:{LB}")
e("s_mov_b32 s56, 0")
e("s_waitcnt lgkmcnt(0)")
lab("L_nofill")
for k in range(8):
    p=16+2*k
    e("s_cmp_ge_u32 s50, s51")
    e("s_cbranch_scc1 L_edges_flush")
    e("s_waitcnt vmcnt(7)")
    e(f"s_cmp_lg_u32 s{68+k}, s57")
    e(f"s_cbranch_scc1 L_flush{k}")
    lab(f"L_back{k}")
    e(f"v_lshlrev_b32 v34, 16, v{p}")
    e(f"v_and_b32 v35, 0xffff0000, v{p}")
    e(f"v_lshlrev_b32 v36, 16, v{p+1}")
    e(f"v_and_b32 v37, 0xffff0000, v{p+1}")
    e("v_readlane_b32 s54, v32, s56")
    e("v_readlane_b32 s55, v33, s56")
    for r in range(4): e(f"v_fma_f32 v{38+r}, s{60+k}, v{4+r}, v{8+r}")
    for r in range(4): e(f"v_add_f32 v{34+r}, v{34+r}, v{38+r}")
    e(f"s_and_b32 s{60+k}, s55, 0xffff0000")
    e(f"s_and_b32 s{68+k}, s55, 7")
    e(f"buffer_load_dwordx2 v[{p}:{p+1}], v1, s[8:11], s54 offen")
    for r in range(4): e(f"v_exp_f32 v{42+r}, v{34+r}")
    for r in range(4): e(f"v_add_f32 v{42+r}, 1.0, v{42+r}")
    for r in range(4): e(f"v_rcp_f32 v{42+r}, v{42+r}")
    e("s_add_u32 s56, s56, 1")
    e("s_add_u32 s50, s50, 1")
    for r in range(4): e(f"v_fma_f32 v{12+r}, v{34+r}, v{42+r}, v{12+r}")
e("s_branch L_group")
def flush(nxt):
    e("s_lshl_b32 s53, s57, 10")
    e("v_add_u32 v76, s53, v3")
    e(f"ds_read_b128 v[92:95], v76 offset:{SACC}")
    e("s_waitcnt lgkmcnt(0)")
    for r in range(4): e(f"v_add_f32 v{92+r}, v{92+r}, v{12+r}")
    e(f"ds_write_b128 v76, v[92:95] offset:{SACC}")
    if nxt is not None:
        for r in range(4): e(f"v_mov_b32 v{12+r}, 0")
        e(f"s_mov_b32 s57, s{68+nxt}")
        e("s_lshl_b32 s53, s57, 10")
        e("v_add_u32 v76, s53, v3")
        e(f"ds_read_b128 v[8:11], v76 offset:{QS}")
        e("s_waitcnt lgkmcnt(0)")
for k in range(8):
    lab(f"L_flush{k}")
    flush(k)
    e(f"s_branch L_back{k}")
lab("L_edges_flush")
flush(None)
lab("L_edges_done")
e("s_waitcnt vmcnt(0) lgkmcnt(0)")
e("s_barrier")
e(f"s_add_u32 s47, s47, {CAP}")
e("s_branch L_batch")
lab("L_final")
SB=16384
e("v_lshlrev_b32 v46, 6, v0")
for q in range(4): e(f"ds_read_b128 v[{48+4*q}:{51+4*q}], v46 offset:{SACC+16*q}")
e(f"s_mov_b32 s48, {C_NLN2}")
e("s_waitcnt lgkmcnt(0)")
for q in range(16): e(f"v_mul_f32 v{48+q}, s48, v{48+q}")
for q in range(8): e(f"v_cvt_pk_bf16_f32 v{64+q}, v{48+2*q}, v{49+2*q}")
e("v_lshlrev_b32 v47, 5, v0")
e(f"ds_write_b128 v47, v[64:67] offset:{SB}")
e(f"ds_write_b128 v47, v[68:71] offset:{SB+16}")
e("v_mov_b32 v72, 0\n    v_mov_b32 v73, 0\n    v_mov_b32 v74, 0\n    v_mov_b32 v75, 0")
e(f"ds_write_b128 v47, v[72:75] offset:{SB+4096}")
e(f"ds_write_b128 v47, v[72:75] offset:{SB+4096+16}")
e("s_waitcnt lgkmcnt(0)")
e("s_barrier")
e("v_and_b32 v46, 15, v2")
e("v_lshrrev_b32 v47, 4, v2")
e("v_lshlrev_b32 v48, 9, v46")
e("v_lshl_add_u32 v48, v47, 4, v48")
for ks in range(8): e(f"ds_read_b128 v[{64+4*ks}:{67+4*ks}], v48 offset:{SB+64*ks}")
e("s_lshl_b32 s48, s3, 15")
for nt in range(4):
    for ks in range(8):
        e(f"buffer_load_dwordx4 v[{96+32*nt+4*ks}:{99+32*nt+4*ks}], v48, s[24:27], s48 offen offset:{64*ks}")
    e(f"s_add_u32 s48, s48, 8192")
e("s_lshl_b32 s49, s3, 7")
e("v_lshlrev_b32 v49, 1, v46")
for nt in range(4): e(f"buffer_load_ushort v{52+nt}, v49, s[36:39], s49 offen offset:{32*nt}")
e("v_lshlrev_b32 v50, 4, v47")
e(f"ds_read_b128 v[56:59], v50 offset:{DEG}")
for i in range(16): e(f"v_mov_b32 v{224+i}, 0")
e("s_waitcnt vmcnt(0) lgkmcnt(0)")
for nt in range(4):
    for ks in range(8):
        e(f"v_mfma_f32_16x16x32_bf16 v[{224+4*nt}:{227+4*nt}], v[{64+4*ks}:{67+4*ks}], v[{96+32*nt+4*ks}:{99+32*nt+4*ks}], v[{224+4*nt}:{227+4*nt}]")
e("s_nop 15")
for i in range(4): e(f"v_cvt_f32_u32 v{56+i}, v{56+i}")
e("s_lshl_b32 s48, s2, 11")
e("s_lshl_b32 s49, s3, 7")
e("s_add_u32 s48, s48, s49")
e("v_lshlrev_b32 v50, 10, v47")
e("v_lshl_add_u32 v50, v46, 1, v50")
e("v_cmp_gt_u32 vcc, 32, v2")
e("s_and_saveexec_b64 s[44:45], vcc")
for nt in range(4):
    e(f"v_lshlrev_b32 v{52+nt}, 16, v{52+nt}")
    for i in range(4):
        e(f"v_fma_f32 v{224+4*nt+i}, v{56+i}, v{52+nt}, v{224+4*nt+i}")
        e(f"v_cvt_pk_bf16_f32 v60, v{224+4*nt+i}, v{224+4*nt+i}")
        e(f"buffer_store_short v60, v50, s[28:31], s48 offen offset:{256*i+32*nt}")
lab("L_main_end")
e("s_endpgm")

def kd(n, vg):
    return f""".section .rodata,"a"
.p2align 6
.amdhsa_kernel {n}
  .amdhsa_next_free_vgpr {vg}
  .amdhsa_next_free_sgpr 102
  .amdhsa_accum_offset {vg}
  .amdhsa_group_segment_fixed_size 0
  .amdhsa_kernarg_size 88
  .amdhsa_user_sgpr_count 2
  .amdhsa_user_sgpr_kernarg_segment_ptr 1
  .amdhsa_system_sgpr_workgroup_id_x 1
.end_amdhsa_kernel
"""
txt = hdr + "\n".join(out) + "\n" + kd("prep_kernel", 256) + kd("main_kernel", 256)
open(sys.argv[1] if len(sys.argv)>1 else f"cdna_kernels/{name}.s","w").write(txt)
```

```python
import sys
N=10000; E=320000; D=128; H=256
W=64; CE=5000; NB=1250
WS_P=0; WS_Q=0x800000; WS_REC=0x2000000; WS_OFFS=0x2400000; WS_W2T=0x2600000; WS_W1C=0x2620000
OFFS_STRIDE=5120
C_SCALE=0xBFB8AA3B
C_NLN2=0xBF317218
name="gather_scatter__edge_featured_mpnn_mpnn__graph"
out=[]
def e(s): out.append("    "+s)
def lab(s): out.append(s+":")

def srd(r, lo, hi, add, nrec):
    if add:
        e(f"s_add_u32 s{r}, s{lo}, {add}")
        e(f"s_addc_u32 s{r+1}, s{hi}, 0")
    else:
        e(f"s_mov_b32 s{r}, s{lo}")
        e(f"s_mov_b32 s{r+1}, s{hi}")
    e(f"s_mov_b32 s{r+2}, {nrec}")
    e(f"s_mov_b32 s{r+3}, 0x00020000")

def wave_scan(v):
    for sh in (1,2,4,8):
        e("s_nop 1")
        e(f"v_add_u32_dpp v{v}, v{v}, v{v} row_shr:{sh} row_mask:0xf bank_mask:0xf bound_ctrl:0")
    e("s_nop 1")
    e(f"v_add_u32_dpp v{v}, v{v}, v{v} row_bcast:15 row_mask:0xa bank_mask:0xf")
    e("s_nop 1")
    e(f"v_add_u32_dpp v{v}, v{v}, v{v} row_bcast:31 row_mask:0xc bank_mask:0xf")

NG=313
hdr=f"""; @launch kernel=prep_kernel grid=({W+NG+32},1,1) block=(512,1,1) lds=6144
; @launch kernel=main_kernel grid=({NB},1,1) block=(256,1,1) lds=27136
.amdgcn_target "amdgcn-amd-amdhsa--gfx950"
.text
"""
out.append(".globl prep_kernel\n.p2align 8\n.type prep_kernel,@function\nprep_kernel:")
e("s_load_dwordx4 s[4:7], s[0:1], 0")
e("s_load_dwordx4 s[8:11], s[0:1], 16")
e("s_load_dwordx4 s[12:15], s[0:1], 32")
e("s_load_dwordx4 s[16:19], s[0:1], 48")
e("s_load_dwordx2 s[20:21], s[0:1], 80")
e("s_waitcnt lgkmcnt(0)")
e(f"s_cmp_ge_u32 s2, {W+NG+32}")
e("s_cbranch_scc1 L_prep_end")
e(f"s_cmp_ge_u32 s2, {W+NG}")
e("s_cbranch_scc1 L_w2t")
e(f"s_cmp_ge_u32 s2, {W}")
e("s_cbranch_scc1 L_gemm")
srd(24, 8, 9, 0, E*4)
srd(28, 10, 11, 0, E*4)
srd(32, 6, 7, 0, E*2)
srd(36, 20, 21, WS_REC, E*8)
srd(40, 20, 21, WS_OFFS, W*OFFS_STRIDE)
e(f"s_mul_i32 s44, s2, {CE}")
e("v_lshlrev_b32 v1, 2, v0")
e("v_mov_b32 v2, 0")
e("ds_write_b32 v1, v2")
e("ds_write_b32 v1, v2 offset:2048")
e("ds_write_b32 v1, v2 offset:4096")
e("v_add_u32 v3, s44, v0")
e("v_lshlrev_b32 v4, 2, v3")
e("v_lshlrev_b32 v5, 1, v3")
e(f"v_cmp_gt_u32 vcc, {CE-512*9}, v0")
e("s_mov_b64 s[46:47], vcc")
for i in range(9):
    e(f"buffer_load_dword v{10+i}, v4, s[28:31], 0 offen offset:{2048*i if 2048*i<4096 else 0}" if 2048*i<4096 else f"s_mov_b32 s45, {2048*i}\n    buffer_load_dword v{10+i}, v4, s[28:31], s45 offen")
    e(f"buffer_load_dword v{20+i}, v4, s[24:27], 0 offen offset:{2048*i}" if 2048*i<4096 else f"buffer_load_dword v{20+i}, v4, s[24:27], s45 offen")
    e(f"buffer_load_ushort v{30+i}, v5, s[32:35], 0 offen offset:{1024*i}" if 1024*i<4096 else f"s_mov_b32 s48, {1024*i}\n    buffer_load_ushort v{30+i}, v5, s[32:35], s48 offen")
e("s_mov_b64 s[50:51], exec")
e("s_mov_b64 exec, s[46:47]")
e(f"s_mov_b32 s45, {2048*9}")
e(f"s_mov_b32 s48, {1024*9}")
e("buffer_load_dword v19, v4, s[28:31], s45 offen")
e("buffer_load_dword v29, v4, s[24:27], s45 offen")
e("buffer_load_ushort v39, v5, s[32:35], s48 offen")
e("s_mov_b64 exec, s[50:51]")
e("s_waitcnt lgkmcnt(0)")
e("s_barrier")
e("v_mov_b32 v2, 1")
for i in range(10):
    if i==9: e("s_mov_b64 exec, s[46:47]")
    e(f"s_waitcnt vmcnt({(9-i)*3+2})" if i<9 else "s_waitcnt vmcnt(0)")
    e(f"v_lshrrev_b32 v6, 3, v{10+i}")
    e("v_lshlrev_b32 v6, 2, v6")
    e(f"ds_add_rtn_u32 v{40+i}, v6, v2")
e("s_mov_b64 exec, s[50:51]")
e("s_waitcnt lgkmcnt(0)")
e("s_barrier")
e("v_cmp_gt_u32 vcc, 64, v0")
e("s_and_saveexec_b64 s[52:53], vcc")
e("s_cbranch_execz L_scan_done")
e("v_mul_u32_u24 v6, 80, v0")
for q in range(5):
    e(f"ds_read_b128 v[{60+4*q}:{63+4*q}], v6 offset:{16*q}")
e("s_waitcnt lgkmcnt(0)")
e("v_mov_b32 v7, 0")
for q in range(20):
    e(f"v_mov_b32 v{80+q}, v7")
    e(f"v_add_u32 v7, v7, v{60+q}")
e("v_mov_b32 v8, v7")
wave_scan(8)
e("v_sub_u32 v8, v8, v7")
for q in range(20):
    e(f"v_add_u32 v{80+q}, v{80+q}, v8")
e(f"s_mul_i32 s45, s2, {OFFS_STRIDE}")
for q in range(5):
    e(f"ds_write_b128 v6, v[{80+4*q}:{83+4*q}] offset:{16*q}")
    e(f"buffer_store_dwordx4 v[{80+4*q}:{83+4*q}], v6, s[40:43], s45 offen offset:{16*q}")
lab("L_scan_done")
e("s_mov_b64 exec, s[52:53]")
e("s_waitcnt lgkmcnt(0)")
e("s_barrier")
e(f"s_lshl_b32 s45, s44, 3")
for i in range(10):
    if i==9: e("s_mov_b64 exec, s[46:47]")
    e(f"v_lshrrev_b32 v6, 3, v{10+i}")
    e("v_lshlrev_b32 v6, 2, v6")
    e("ds_read_b32 v7, v6")
    e(f"v_and_b32 v8, 7, v{10+i}")
    e("v_lshlrev_b32 v8, 16, v8")
    e(f"v_or_b32 v51, v8, v{30+i}")
    e(f"v_mov_b32 v50, v{20+i}")
    e("s_waitcnt lgkmcnt(0)")
    e(f"v_add_u32 v7, v7, v{40+i}")
    e("v_lshlrev_b32 v7, 3, v7")
    e("buffer_store_dwordx2 v[50:51], v7, s[36:39], s45 offen")
    e("s_nop 1")
e("s_endpgm")
lab("L_gemm")
srd(24, 12, 13, 0, 257*512)
srd(28, 4, 5, 0, N*256)
srd(32, 20, 21, WS_P, N*512)
srd(36, 20, 21, WS_Q, N*1024)
srd(40, 14, 15, 0, 512)
e(f"s_sub_u32 s44, s2, {W}")
e("v_lshrrev_b32 v1, 6, v0")
e("s_nop 0")
e("v_readfirstlane_b32 s45, v1")
e("v_and_b32 v1, 63, v0")
e("v_and_b32 v2, 31, v1")
e("v_lshrrev_b32 v3, 5, v1")
e("s_lshl_b32 s46, s45, 6")
e("s_and_b32 s47, s46, 255")
e("s_cmp_ge_u32 s45, 4")
e("s_cselect_b32 s48, 128, 0")
e("v_lshlrev_b32 v4, 3, v3")
e("v_add_u32 v4, s48, v4")
e("v_lshlrev_b32 v4, 9, v4")
e("v_add_u32 v5, s47, v2")
e("v_lshlrev_b32 v5, 1, v5")
e("v_add_u32 v4, v4, v5")
e("s_lshl_b32 s49, s44, 5")
e("v_add_u32 v6, s49, v2")
e("v_lshlrev_b32 v7, 8, v6")
e("v_lshlrev_b32 v8, 4, v3")
e("v_add_u32 v7, v7, v8")
for i in range(32): e(f"v_mov_b32 v{88+i}, 0")
for bt in range(4):
    for q in range(2):
        ks=2*bt+q
        e(f"buffer_load_dwordx4 v[{32+4*q}:{35+4*q}], v7, s[28:31], 0 offen offset:{32*ks}")
        e(f"s_mov_b32 s50, {8192*ks}")
        for mt in range(2):
            t=40+16*q+8*mt
            for j in range(8):
                e(f"buffer_load_ushort v{t+j}, v4, s[24:27], s50 offen offset:{512*j+64*mt}")
    e("s_waitcnt vmcnt(0)")
    for q in range(2):
        for mt in range(2):
            t=40+16*q+8*mt; bb=72+8*q+4*mt
            for j in range(4):
                e(f"v_lshl_or_b32 v{bb+j}, v{t+2*j+1}, 16, v{t+2*j}")
    e("s_nop 1")
    for q in range(2):
        for mt in range(2):
            e(f"v_mfma_f32_32x32x16_bf16 v[{88+16*mt}:{103+16*mt}], v[{72+8*q+4*mt}:{75+8*q+4*mt}], v[{32+4*q}:{35+4*q}], v[{88+16*mt}:{103+16*mt}]")
    e("s_nop 7")
e("s_nop 15")
e("s_nop 7")
e(f"s_mov_b32 s51, {C_SCALE}")
e("s_cmp_ge_u32 s45, 4")
e("s_cbranch_scc1 L_gemm_q")
e("v_lshlrev_b32 v9, 9, v6")
e("v_lshlrev_b32 v10, 3, v3")
e("v_add_u32 v9, v9, v10")
e("s_lshl_b32 s52, s46, 1")
for mt in range(2):
    for g in range(4):
        a=88+16*mt+4*g
        for r in range(4): e(f"v_mul_f32 v{a+r}, s51, v{a+r}")
        e(f"v_cvt_pk_bf16_f32 v{12}, v{a}, v{a+1}")
        e(f"v_cvt_pk_bf16_f32 v{13}, v{a+2}, v{a+3}")
        e(f"buffer_store_dwordx2 v[12:13], v9, s[32:35], s52 offen offset:{64*mt+16*g}")
        e("s_nop 1")
e("s_endpgm")
lab("L_gemm_q")
e("v_lshlrev_b32 v10, 3, v3")
e("s_lshl_b32 s52, s47, 1")
for mt in range(2):
    for g in range(4):
        e(f"buffer_load_dwordx2 v[{16+8*mt+2*g}:{17+8*mt+2*g}], v10, s[40:43], s52 offen offset:{64*mt+16*g}")
e("v_lshlrev_b32 v9, 10, v6")
e("v_lshlrev_b32 v10, 4, v3")
e("v_add_u32 v9, v9, v10")
e("s_lshl_b32 s52, s47, 2")
e("s_waitcnt vmcnt(0)")
for mt in range(2):
    for g in range(4):
        a=88+16*mt+4*g; bb=16+8*mt+2*g
        e(f"v_lshlrev_b32 v12, 16, v{bb}")
        e(f"v_and_b32 v13, 0xffff0000, v{bb}")
        e(f"v_lshlrev_b32 v14, 16, v{bb+1}")
        e(f"v_and_b32 v15, 0xffff0000, v{bb+1}")
        for r in range(4):
            e(f"v_add_f32 v{a+r}, v{a+r}, v{12+r}")
            e(f"v_mul_f32 v{a+r}, s51, v{a+r}")
        e(f"buffer_store_dwordx4 v[{a}:{a+3}], v9, s[36:39], s52 offen offset:{128*mt+32*g}")
e("s_endpgm")
lab("L_w2t")
srd(24, 16, 17, 0, 256*128*2)
srd(28, 20, 21, WS_W2T, 256*128*2)
srd(32, 12, 13, 256*512, 512)
srd(36, 20, 21, WS_W1C, 1024)
e("v_lshlrev_b32 v1, 1, v0")
e("v_lshrrev_b32 v2, 7, v0")
e("v_and_b32 v3, 127, v0")
e("v_lshlrev_b32 v3, 9, v3")
e("v_lshl_add_u32 v3, v2, 1, v3")
e(f"s_sub_u32 s43, s2, {W+NG}")
e("s_lshl_b32 s40, s43, 11")
e("s_lshl_b32 s44, s43, 4")
e("buffer_load_ushort v10, v1, s[24:27], s40 offen")
e("buffer_load_ushort v11, v1, s[24:27], s40 offen offset:1024")
e("s_waitcnt vmcnt(0)")
e("buffer_store_short v10, v3, s[28:31], s44 offen")
e("buffer_store_short v11, v3, s[28:31], s44 offen offset:8")
e("s_cmp_lg_u32 s43, 0")
e("s_cbranch_scc1 L_prep_end")
e("v_cmp_gt_u32 vcc, 256, v0")
e("s_and_saveexec_b64 s[40:41], vcc")
e("s_cbranch_execz L_prep_end")
e("buffer_load_ushort v4, v1, s[32:35], 0 offen")
e(f"s_mov_b32 s42, {C_SCALE}")
e("v_lshlrev_b32 v5, 2, v0")
e("s_waitcnt vmcnt(0)")
e("v_lshlrev_b32 v4, 16, v4")
e("v_mul_f32 v4, s42, v4")
e("buffer_store_dword v4, v5, s[36:39], 0 offen")
lab("L_prep_end")
e("s_endpgm")

SACC=0; QS=8192; LA=16384; LB=20480; CNT=25600; NOFF=25664; DEG=25728; CST=25856; CSRC=26112; CCNT=26368; TOT=26624
CAP=512
out.append(".globl main_kernel\n.p2align 8\n.type main_kernel,@function\nmain_kernel:")
e("s_load_dwordx2 s[4:5], s[0:1], 80")
e("s_load_dwordx2 s[6:7], s[0:1], 64")
e("s_load_dwordx2 s[40:41], s[0:1], 56")
e("s_waitcnt lgkmcnt(0)")
e(f"s_cmp_ge_u32 s2, {NB}")
e("s_cbranch_scc1 L_main_end")
srd(8, 4, 5, WS_P, N*512)
srd(12, 4, 5, WS_REC, E*8)
srd(16, 4, 5, WS_OFFS, W*OFFS_STRIDE)
srd(20, 4, 5, WS_Q, N*1024)
srd(24, 4, 5, WS_W2T, 65536)
srd(28, 6, 7, 0, N*256)
srd(32, 4, 5, WS_W1C, 1024)
srd(36, 40, 41, 0, 256)
e("v_and_b32 v2, 63, v0")
e("v_lshlrev_b32 v1, 3, v2")
e("v_lshlrev_b32 v3, 4, v2")
e("v_lshrrev_b32 v46, 6, v0")
e("s_nop 0")
e("v_readfirstlane_b32 s3, v46")
e("v_lshlrev_b32 v46, 6, v0")
e("s_lshl_b32 s42, s2, 13")
e("buffer_load_dwordx4 v[4:7], v3, s[32:35], 0 offen")
e("v_mov_b32 v64, 0\n    v_mov_b32 v65, 0\n    v_mov_b32 v66, 0\n    v_mov_b32 v67, 0")
e("v_cmp_gt_u32 vcc, 128, v0")
e("s_and_saveexec_b64 s[76:77], vcc")
for q in range(4): e(f"buffer_load_dwordx4 v[{48+4*q}:{51+4*q}], v46, s[20:23], s42 offen offset:{16*q}")
for q in range(4): e(f"ds_write_b128 v46, v[64:67] offset:{SACC+16*q}")
e("s_mov_b64 exec, s[76:77]")
e("v_lshlrev_b32 v47, 2, v0")
e("v_cmp_gt_u32 vcc, 8, v0")
e("s_and_saveexec_b64 s[44:45], vcc")
e(f"ds_write_b32 v47, v64 offset:{DEG}")
e("s_mov_b64 exec, s[44:45]")
e("v_cmp_gt_u32 vcc, 64, v0")
e("s_and_saveexec_b64 s[44:45], vcc")
e("s_cbranch_execz L_b_done")
e(f"v_mul_u32_u24 v68, {OFFS_STRIDE}, v0")
e("s_lshl_b32 s42, s2, 2")
e("buffer_load_dwordx2 v[70:71], v68, s[16:19], s42 offen")
e("s_waitcnt vmcnt(0)")
e("v_sub_u32 v72, v71, v70")
e("v_mov_b32 v73, v72")
wave_scan(73)
e("v_sub_u32 v74, v73, v72")
e(f"v_mul_u32_u24 v75, {CE}, v0")
e("v_add_u32 v75, v75, v70")
e(f"ds_write_b32 v47, v74 offset:{CST}")
e(f"ds_write_b32 v47, v75 offset:{CSRC}")
e(f"ds_write_b32 v47, v72 offset:{CCNT}")
e("v_cmp_eq_u32 vcc, 63, v0")
e("s_and_b64 exec, exec, vcc")
e("v_mov_b32 v76, 0")
e(f"ds_write_b32 v76, v73 offset:{TOT}")
lab("L_b_done")
e("s_mov_b64 exec, s[44:45]")
e("s_waitcnt vmcnt(0)")
e("v_cmp_gt_u32 vcc, 128, v0")
e("s_and_saveexec_b64 s[76:77], vcc")
for q in range(4): e(f"ds_write_b128 v46, v[{48+4*q}:{51+4*q}] offset:{QS+16*q}")
e("s_mov_b64 exec, s[76:77]")
e("s_waitcnt lgkmcnt(0)")
e("s_barrier")
e("v_mov_b32 v76, 0")
e(f"ds_read_b32 v77, v76 offset:{TOT}")
e("v_lshrrev_b32 v78, 2, v0")
e("v_lshlrev_b32 v78, 2, v78")
e(f"ds_read_b32 v79, v78 offset:{CST}")
e(f"ds_read_b32 v80, v78 offset:{CSRC}")
e(f"ds_read_b32 v81, v78 offset:{CCNT}")
e("s_waitcnt lgkmcnt(0)")
e("v_readfirstlane_b32 s46, v77")
e("s_mov_b32 s47, 0")
lab("L_batch")
e("s_cmp_ge_u32 s47, s46")
e("s_cbranch_scc1 L_final")
e("v_cmp_gt_u32 vcc, 8, v0")
e("s_and_saveexec_b64 s[44:45], vcc")
e(f"ds_write_b32 v47, v64 offset:{CNT}")
e("s_mov_b64 exec, s[44:45]")
e("s_waitcnt lgkmcnt(0)")
e("s_barrier")
e("v_and_b32 v82, 3, v0")
lab("L_copy")
e("v_cmp_lt_u32 vcc, v82, v81")
e("s_and_saveexec_b64 s[44:45], vcc")
e("s_cbranch_execz L_copy_done")
e("v_add_u32 v83, v79, v82")
e("v_subrev_u32 v83, s47, v83")
e(f"v_cmp_gt_u32 vcc, {CAP}, v83")
e("s_and_saveexec_b64 s[48:49], vcc")
e("s_cbranch_execz L_copy_skip")
e("v_add_u32 v84, v80, v82")
e("v_lshlrev_b32 v84, 3, v84")
e("buffer_load_dwordx2 v[86:87], v84, s[12:15], 0 offen")
e("v_mov_b32 v85, 1")
e("s_waitcnt vmcnt(0)")
e("v_lshrrev_b32 v88, 16, v87")
e("v_lshlrev_b32 v89, 2, v88")
e(f"ds_add_rtn_u32 v90, v89, v85 offset:{CNT}")
e("v_lshlrev_b32 v87, 16, v87")
e("v_or_b32 v87, v87, v88")
e("v_lshlrev_b32 v83, 3, v83")
e("s_waitcnt lgkmcnt(0)")
e("v_lshl_or_b32 v86, v90, 16, v86")
e(f"ds_write_b64 v83, v[86:87] offset:{LA}")
lab("L_copy_skip")
e("s_mov_b64 exec, s[44:45]")
e("v_add_u32 v82, 4, v82")
e("s_branch L_copy")
lab("L_copy_done")
e("s_mov_b64 exec, s[44:45]")
e("s_waitcnt lgkmcnt(0)")
e("s_barrier")
e("v_mov_b32 v76, 0")
e(f"ds_read_b128 v[92:95], v76 offset:{CNT}")
e(f"ds_read_b128 v[96:99], v76 offset:{CNT+16}")
e("s_waitcnt lgkmcnt(0)")
e("v_mov_b32 v100, 0")
for q in range(8): e(f"v_add_u32 v{101+q}, v{100+q}, v{92+q}")
e("v_cmp_eq_u32 vcc, 0, v0")
e("s_and_saveexec_b64 s[44:45], vcc")
e(f"ds_write_b128 v76, v[100:103] offset:{NOFF}")
e(f"ds_write_b128 v76, v[104:107] offset:{NOFF+16}")
e(f"ds_write_b32 v76, v108 offset:{NOFF+32}")
e(f"ds_add_u32 v76, v92 offset:{DEG}")
for q in range(1,8): e(f"ds_add_u32 v76, v{92+q} offset:{DEG+4*q}")
e("s_mov_b64 exec, s[44:45]")
e("s_waitcnt lgkmcnt(0)")
e("s_barrier")
e("s_sub_u32 s48, s46, s47")
e(f"s_min_u32 s48, s48, {CAP}")
e("v_mov_b32 v82, v0")
lab("L_move")
e("v_cmp_gt_u32 vcc, s48, v82")
e("s_and_saveexec_b64 s[44:45], vcc")
e("s_cbranch_execz L_move_done")
e("v_lshlrev_b32 v83, 3, v82")
e(f"ds_read_b64 v[86:87], v83 offset:{LA}")
e("s_waitcnt lgkmcnt(0)")
e("v_and_b32 v88, 7, v87")
e("v_lshlrev_b32 v88, 2, v88")
e(f"ds_read_b32 v89, v88 offset:{NOFF}")
e("v_lshrrev_b32 v90, 16, v86")
e("v_and_b32 v86, 0xffff, v86")
e("v_lshlrev_b32 v86, 9, v86")
e("s_waitcnt lgkmcnt(0)")
e("v_add_u32 v89, v89, v90")
e("v_lshlrev_b32 v89, 3, v89")
e(f"ds_write_b64 v89, v[86:87] offset:{LB}")
e("s_mov_b64 exec, s[44:45]")
e("v_add_u32 v82, 256, v82")
e("s_branch L_move")
lab("L_move_done")
e("s_mov_b64 exec, s[44:45]")
e("s_waitcnt lgkmcnt(0)")
e("s_barrier")
e("s_lshl_b32 s48, s3, 3")
e("v_mov_b32 v76, s48")
e(f"ds_read_b32 v77, v76 offset:{NOFF}")
e(f"ds_read_b32 v78, v76 offset:{NOFF+8}")
e("s_waitcnt lgkmcnt(0)")
e("v_readfirstlane_b32 s50, v77")
e("v_readfirstlane_b32 s51, v78")
e("s_nop 3")
e("s_cmp_ge_u32 s50, s51")
e("s_cbranch_scc1 L_edges_done")
e("s_mov_b32 s52, s50")
e("s_lshl_b32 s53, s52, 3")
e("v_add_u32 v76, s53, v1")
e(f"ds_read_b64 v[32:33], v76 offset:{LB}")
e("s_waitcnt lgkmcnt(0)")
for k in range(8):
    e(f"v_readlane_b32 s54, v32, {k}")
    e(f"v_readlane_b32 s55, v33, {k}")
    e("s_nop 4")
    e(f"s_and_b32 s{60+k}, s55, 0xffff0000")
    e(f"s_and_b32 s{68+k}, s55, 7")
    e(f"buffer_load_dwordx2 v[{16+2*k}:{17+2*k}], v1, s[8:11], s54 offen")
e("s_mov_b32 s56, 8")
e("s_mov_b32 s57, s68")
e("s_lshl_b32 s53, s57, 10")
e("v_add_u32 v76, s53, v3")
e(f"ds_read_b128 v[8:11], v76 offset:{QS}")
for r in range(4): e(f"v_mov_b32 v{12+r}, 0")
e("s_waitcnt lgkmcnt(0)")
lab("L_group")
e("s_cmp_lt_u32 s56, 64")
e("s_cbranch_scc1 L_nofill")
e("s_add_u32 s52, s52, 64")
e("s_lshl_b32 s53, s52, 3")
e("v_add_u32 v76, s53, v1")
e(f"ds_read_b64 v[32:33], v76 offset:{LB}")
e("s_mov_b32 s56, 0")
e("s_waitcnt lgkmcnt(0)")
lab("L_nofill")
for k in range(8):
    p=16+2*k
    e("s_cmp_ge_u32 s50, s51")
    e("s_cbranch_scc1 L_edges_flush")
    e("s_waitcnt vmcnt(7)")
    e(f"s_cmp_lg_u32 s{68+k}, s57")
    e(f"s_cbranch_scc1 L_flush{k}")
    lab(f"L_back{k}")
    e(f"v_lshlrev_b32 v34, 16, v{p}")
    e(f"v_and_b32 v35, 0xffff0000, v{p}")
    e(f"v_lshlrev_b32 v36, 16, v{p+1}")
    e(f"v_and_b32 v37, 0xffff0000, v{p+1}")
    e("v_readlane_b32 s54, v32, s56")
    e("v_readlane_b32 s55, v33, s56")
    for r in range(4): e(f"v_fma_f32 v{38+r}, s{60+k}, v{4+r}, v{8+r}")
    for r in range(4): e(f"v_add_f32 v{34+r}, v{34+r}, v{38+r}")
    e(f"s_and_b32 s{60+k}, s55, 0xffff0000")
    e(f"s_and_b32 s{68+k}, s55, 7")
    e(f"buffer_load_dwordx2 v[{p}:{p+1}], v1, s[8:11], s54 offen")
    for r in range(4): e(f"v_exp_f32 v{42+r}, v{34+r}")
    for r in range(4): e(f"v_add_f32 v{42+r}, 1.0, v{42+r}")
    for r in range(4): e(f"v_rcp_f32 v{42+r}, v{42+r}")
    e("s_add_u32 s56, s56, 1")
    e("s_add_u32 s50, s50, 1")
    for r in range(4): e(f"v_fma_f32 v{12+r}, v{34+r}, v{42+r}, v{12+r}")
e("s_branch L_group")
def flush(nxt):
    e("s_lshl_b32 s53, s57, 10")
    e("v_add_u32 v76, s53, v3")
    e(f"ds_read_b128 v[92:95], v76 offset:{SACC}")
    e("s_waitcnt lgkmcnt(0)")
    for r in range(4): e(f"v_add_f32 v{92+r}, v{92+r}, v{12+r}")
    e(f"ds_write_b128 v76, v[92:95] offset:{SACC}")
    if nxt is not None:
        for r in range(4): e(f"v_mov_b32 v{12+r}, 0")
        e(f"s_mov_b32 s57, s{68+nxt}")
        e("s_lshl_b32 s53, s57, 10")
        e("v_add_u32 v76, s53, v3")
        e(f"ds_read_b128 v[8:11], v76 offset:{QS}")
        e("s_waitcnt lgkmcnt(0)")
for k in range(8):
    lab(f"L_flush{k}")
    flush(k)
    e(f"s_branch L_back{k}")
lab("L_edges_flush")
flush(None)
lab("L_edges_done")
e("s_waitcnt vmcnt(0) lgkmcnt(0)")
e("s_barrier")
e(f"s_add_u32 s47, s47, {CAP}")
e("s_branch L_batch")
lab("L_final")
SB=16384
e("v_cmp_gt_u32 vcc, 128, v0")
e("s_and_saveexec_b64 s[76:77], vcc")
e("v_lshlrev_b32 v46, 6, v0")
for q in range(4): e(f"ds_read_b128 v[{48+4*q}:{51+4*q}], v46 offset:{SACC+16*q}")
e(f"s_mov_b32 s48, {C_NLN2}")
e("s_waitcnt lgkmcnt(0)")
for q in range(16): e(f"v_mul_f32 v{48+q}, s48, v{48+q}")
for q in range(8): e(f"v_cvt_pk_bf16_f32 v{64+q}, v{48+2*q}, v{49+2*q}")
e("v_lshlrev_b32 v47, 5, v0")
e(f"ds_write_b128 v47, v[64:67] offset:{SB}")
e(f"ds_write_b128 v47, v[68:71] offset:{SB+16}")
e("v_mov_b32 v72, 0\n    v_mov_b32 v73, 0\n    v_mov_b32 v74, 0\n    v_mov_b32 v75, 0")
e(f"ds_write_b128 v47, v[72:75] offset:{SB+4096}")
e(f"ds_write_b128 v47, v[72:75] offset:{SB+4096+16}")
e("s_mov_b64 exec, s[76:77]")
e("s_waitcnt lgkmcnt(0)")
e("s_barrier")
e("v_and_b32 v46, 15, v2")
e("v_lshrrev_b32 v47, 4, v2")
e("v_lshlrev_b32 v48, 9, v46")
e("v_lshl_add_u32 v48, v47, 4, v48")
for ks in range(8): e(f"ds_read_b128 v[{64+4*ks}:{67+4*ks}], v48 offset:{SB+64*ks}")
e("s_lshl_b32 s78, s3, 14")
e("s_lshl_b32 s49, s3, 6")
e("v_lshlrev_b32 v49, 1, v46")
for nt in range(2): e(f"buffer_load_ushort v{52+nt}, v49, s[36:39], s49 offen offset:{32*nt}")
e("v_lshlrev_b32 v50, 4, v47")
e(f"ds_read_b128 v[56:59], v50 offset:{DEG}")
for i in range(8): e(f"v_mov_b32 v{16+i}, 0")
e("s_waitcnt vmcnt(0) lgkmcnt(0)")
for nt in range(2):
    for ks in range(8):
        e(f"buffer_load_dwordx4 v[{96+4*ks}:{99+4*ks}], v48, s[24:27], s78 offen offset:{64*ks}")
    e("s_add_u32 s78, s78, 8192")
    e("s_waitcnt vmcnt(0)")
    for ks in range(8):
        e(f"v_mfma_f32_16x16x32_bf16 v[{16+4*nt}:{19+4*nt}], v[{64+4*ks}:{67+4*ks}], v[{96+4*ks}:{99+4*ks}], v[{16+4*nt}:{19+4*nt}]")
    e("s_nop 7")
e("s_nop 15")
for i in range(4): e(f"v_cvt_f32_u32 v{56+i}, v{56+i}")
e("s_lshl_b32 s48, s2, 11")
e("s_lshl_b32 s49, s3, 6")
e("s_add_u32 s48, s48, s49")
e("v_lshlrev_b32 v50, 10, v47")
e("v_lshl_add_u32 v50, v46, 1, v50")
e("v_cmp_gt_u32 vcc, 32, v2")
e("s_and_saveexec_b64 s[44:45], vcc")
for nt in range(2):
    e(f"v_lshlrev_b32 v{52+nt}, 16, v{52+nt}")
    for i in range(4):
        e(f"v_fma_f32 v{16+4*nt+i}, v{56+i}, v{52+nt}, v{16+4*nt+i}")
        e(f"v_cvt_pk_bf16_f32 v60, v{16+4*nt+i}, v{16+4*nt+i}")
        e(f"buffer_store_short v60, v50, s[28:31], s48 offen offset:{256*i+32*nt}")
lab("L_main_end")
e("s_endpgm")

def kd(n, vg):
    return f""".section .rodata,"a"
.p2align 6
.amdhsa_kernel {n}
  .amdhsa_next_free_vgpr {vg}
  .amdhsa_next_free_sgpr 102
  .amdhsa_accum_offset {vg}
  .amdhsa_group_segment_fixed_size 0
  .amdhsa_kernarg_size 88
  .amdhsa_user_sgpr_count 2
  .amdhsa_user_sgpr_kernarg_segment_ptr 1
  .amdhsa_system_sgpr_workgroup_id_x 1
.end_amdhsa_kernel
"""
txt = hdr + "\n".join(out) + "\n" + kd("prep_kernel", 128) + kd("main_kernel", 128)
open(sys.argv[1] if len(sys.argv)>1 else f"cdna_kernels/{name}.s","w").write(txt)
```
